```python
import torch

def _softmax(x, axis=-1):
    return torch.softmax(x, dim=axis)
def _gelu(x):
    return torch.nn.functional.gelu(x, approximate="tanh")
def _silu(x):
    return torch.nn.functional.silu(x)
def _sigmoid(x):
    return torch.sigmoid(x)
def _layernorm(x, axis=-1, eps=1e-5):
    m = x.mean(dim=axis, keepdim=True)
    v = x.var(dim=axis, keepdim=True, unbiased=False)
    return (x - m) / torch.sqrt(v + eps)
def _scatter_add(tgt, idx, src, axis=0):
    return tgt.clone().index_add_(axis, idx, src)
def _segment_sum(src, seg, n):
    out = torch.zeros((n,) + src.shape[1:], dtype=src.dtype)
    return out.index_add_(0, seg, src)
def _pad(x, pw):
    flat = tuple(v for pair in reversed(pw) for v in pair)
    return torch.nn.functional.pad(x, flat)

kernel_name = 'concat_heads__gqa_block_cached__sliding_block_cached__decode'

def setup_inputs():

    _w = (lambda a: (lambda t: t.to(torch.bfloat16) if t.is_floating_point() else t)(torch.as_tensor(a)))
    def _A_setup():
        B, Sq, D = 1, 1, 640
        Hq, Hkv, Sk, Dh = 32, 32, 4096, 128
        assert Hq % Hkv == 0, (Hq, Hkv)
        return {
            "x": _w((lambda *s: torch.randn(*s, dtype=torch.bfloat16) * 3.2)(B, Sq, D)),
            "k_cache": _w((lambda *s: torch.randn(*s, dtype=torch.bfloat16) * 6.4)(B, Hkv, Sk, Dh)),
            "v_cache": _w((lambda *s: torch.randn(*s, dtype=torch.bfloat16) * 0.1)(B, Hkv, Sk, Dh)),
            "wq": _w((lambda *s: torch.randn(*s, dtype=torch.bfloat16) * 6.4)(D, Hq * Dh) * (D ** -0.5)),
            "wo": _w((lambda *s: torch.randn(*s, dtype=torch.bfloat16) * 0.1)(Hq * Dh, D) * ((Hq * Dh) ** -0.5)),
        }
    _A_in = _A_setup()

    def _B_setup():
        B, Sq, D = 1, 1, 640
        Hq, Hkv, Sk, Dh = 32, 32, 4096, 128
        assert Hq % Hkv == 0, (Hq, Hkv)
        return {
            "x": _w((lambda *s: torch.randn(*s, dtype=torch.bfloat16) * 1.6)(B, Sq, D)),
            "k_cache": _w((lambda *s: torch.randn(*s, dtype=torch.bfloat16) * 3.2)(B, Hkv, Sk, Dh)),
            "v_cache": _w((lambda *s: torch.randn(*s, dtype=torch.bfloat16) * 0.1)(B, Hkv, Sk, Dh)),
            "wq": _w((lambda *s: torch.randn(*s, dtype=torch.bfloat16) * 3.2)(D, Hq * Dh) * (D ** -0.5)),
            "wo": _w((lambda *s: torch.randn(*s, dtype=torch.bfloat16) * 0.1)(Hq * Dh, D) * ((Hq * Dh) ** -0.5)),
        }
    _B_in = _B_setup()

    return {
        "A_x": _A_in["x"],
        "A_k_cache": _A_in["k_cache"],
        "A_v_cache": _A_in["v_cache"],
        "A_wq": _A_in["wq"],
        "A_wo": _A_in["wo"],
        "B_x": _B_in["x"],
        "B_k_cache": _B_in["k_cache"],
        "B_v_cache": _B_in["v_cache"],
        "B_wq": _B_in["wq"],
        "B_wo": _B_in["wo"],
    }

def reference(A_x, A_k_cache, A_v_cache, A_wq, A_wo, B_x, B_k_cache, B_v_cache, B_wq, B_wo):
    def _A_ref(x, k_cache, v_cache, wq, wo):
        B, Sq, D = x.shape
        Hq, Dh = 32, 128
        Hkv = k_cache.shape[1]
        rep = Hq // Hkv
        q = (lambda x, *d: x.permute(*d))((x @ wq).reshape(B, Sq, Hq, Dh), 0, 2, 1, 3)
        k = (lambda x, n, axis: torch.repeat_interleave(x, n, dim=axis))(k_cache, rep, axis=1)
        v = (lambda x, n, axis: torch.repeat_interleave(x, n, dim=axis))(v_cache, rep, axis=1)
        scores = torch.einsum("bhqd,bhkd->bhqk", q, k) * (Dh ** -0.5)
        p = _softmax(scores, axis=-1)
        o = torch.einsum("bhqk,bhkd->bhqd", p, v)
        return (lambda x, *d: x.permute(*d))(o, 0, 2, 1, 3).reshape(B, Sq, Hq * Dh) @ wo

    def _B_ref(x, k_cache, v_cache, wq, wo):
        B, Sq, D = x.shape
        Hq, Dh = 32, 128
        Hkv, Sk = k_cache.shape[1], k_cache.shape[2]
        W = min(4096, max(256, Sk // 4))
        rep = Hq // Hkv
        q = (lambda x, *d: x.permute(*d))((x @ wq).reshape(B, Sq, Hq, Dh), 0, 2, 1, 3)
        k = (lambda x, n, axis: torch.repeat_interleave(x, n, dim=axis))(k_cache[:, :, Sk - W:, :], rep, axis=1)
        v = (lambda x, n, axis: torch.repeat_interleave(x, n, dim=axis))(v_cache[:, :, Sk - W:, :], rep, axis=1)
        scores = torch.einsum("bhqd,bhkd->bhqk", q, k) * (Dh ** -0.5)
        p = _softmax(scores, axis=-1)
        o = torch.einsum("bhqk,bhkd->bhqd", p, v)
        return (lambda x, *d: x.permute(*d))(o, 0, 2, 1, 3).reshape(B, Sq, Hq * Dh) @ wo

    a = _A_ref(A_x, A_k_cache, A_v_cache, A_wq, A_wo)
    b = _B_ref(B_x, B_k_cache, B_v_cache, B_wq, B_wo)
    return torch.concatenate([a, b], axis=-1)
```

```python
import re

def parse_regs(op):
    op = op.strip()
    op = op.lstrip('-')
    m = re.fullmatch(r'abs\((.*)\)', op)
    if m: op = m.group(1)
    op = op.strip('|')
    m = re.fullmatch(r'([vs])\[(\d+):(\d+)\]', op)
    if m:
        return {(m.group(1), i) for i in range(int(m.group(2)), int(m.group(3)) + 1)}
    m = re.fullmatch(r'([vs])(\d+)', op)
    if m:
        return {(m.group(1), int(m.group(2)))}
    if op == 'vcc': return {('s', 'vcc_lo'), ('s', 'vcc_hi')}
    if op in ('vcc_lo', 'vcc_hi'): return {('s', op)}
    if op == 'exec': return {('s', 'exec_lo'), ('s', 'exec_hi')}
    if op in ('exec_lo', 'exec_hi', 'm0'): return {('s', op)}
    return set()

TRANS = ('v_exp_f32', 'v_log_f32', 'v_rcp_f32', 'v_rsq_f32', 'v_sqrt_f32', 'v_sin_f32', 'v_cos_f32')

class Ins:
    def __init__(self, text):
        self.text = text
        t = text.split(';')[0].strip()
        parts = t.split(None, 1)
        self.mn = parts[0]
        rest = parts[1] if len(parts) > 1 else ''
        ops, depth, cur = [], 0, ''
        for ch in rest:
            if ch == '[': depth += 1
            if ch == ']': depth -= 1
            if ch == ',' and depth == 0:
                ops.append(cur.strip()); cur = ''
            else:
                cur += ch
        if cur.strip(): ops.append(cur.strip())
        self.mods = ''
        if ops:
            last = ops[-1].split(None, 1)
            ops[-1] = last[0]
            self.mods = last[1] if len(last) > 1 else ''
        self.ops = ops
        mn = self.mn
        self.is_mfma = mn.startswith('v_mfma')
        self.is_valu = mn.startswith('v_') and not self.is_mfma
        self.is_dpp = ('row_' in self.mods) or ('quad_perm' in self.mods) or mn.endswith('_dpp')
        self.is_trans = any(mn.startswith(x) for x in TRANS)
        self.is_dot = mn.startswith('v_dot')
        self.is_perml = mn.startswith('v_permlane')
        self.is_rdlane = mn.startswith('v_readlane') or mn.startswith('v_readfirstlane')
        self.is_vmem = mn.startswith('buffer_') or mn.startswith('global_') or mn.startswith('flat_')
        self.is_ds = mn.startswith('ds_')
        self.is_nop = mn == 's_nop'
        self.w = set(); self.r = set()
        R = [parse_regs(o) for o in ops]
        if self.is_mfma:
            self.w = R[0]; self.ra = R[1] | R[2]; self.rc = R[3]; self.r = self.ra | self.rc
        elif self.is_valu:
            if self.is_perml:
                self.w = R[0] | R[1]; self.r = R[0] | R[1]
            elif mn.startswith('v_cmp'):
                self.w = R[0]; self.r = set().union(*R[1:])
            elif mn.startswith('v_add_co') or mn.startswith('v_sub_co') or mn.startswith('v_addc_co'):
                self.w = R[0] | R[1]; self.r = set().union(*R[2:])
            else:
                self.w = R[0]; self.r = set().union(*R[1:]) if len(R) > 1 else set()
                if mn.startswith('v_fmac') or mn.startswith('v_dot2c') or self.is_dpp:
                    self.r |= R[0]
                if mn.startswith('v_cndmask') and len(ops) == 3:
                    self.r |= parse_regs('vcc')
        elif self.is_vmem:
            if '_load' in mn:
                self.w = R[0]; self.r = set().union(*R[1:])
            else:
                if mn.startswith('buffer_'):
                    self.data = R[0]; self.r = set().union(*R)
                else:
                    self.data = R[1]; self.r = set().union(*R)
        elif self.is_ds:
            if 'read' in mn or 'permute' in mn or 'swizzle' in mn:
                self.w = R[0]; self.r = set().union(*R[1:])
            else:
                self.r = set().union(*R)
        else:
            if mn.startswith('s_cmp') or mn.startswith('s_cbranch') or mn in ('s_waitcnt', 's_barrier', 's_nop', 's_sleep', 's_branch', 's_endpgm', 's_setprio'):
                self.r = set().union(*R) if R else set()
            else:
                self.w = R[0] if R else set(); self.r = set().union(*R[1:]) if len(R) > 1 else set()
    def states(self):
        if self.is_nop:
            return int(self.ops[0], 0) + 1
        return 1

def need(prod, cons):
    n = 0
    pw = prod.w
    vw = {x for x in pw if x[0] == 'v'}
    sw = {x for x in pw if x[0] == 's'}
    if prod.is_valu:
        if vw & cons.r:
            if cons.is_dpp and cons.is_valu: n = max(n, 2)
            if cons.is_mfma: n = max(n, 2)
            if cons.is_perml: n = max(n, 2)
            if cons.is_rdlane: n = max(n, 1)
            if prod.is_trans and cons.is_valu and not cons.is_trans: n = max(n, 1)
            if prod.is_trans and (cons.is_mfma): n = max(n, 2)
        if prod.is_dot and (vw & (cons.r | cons.w)):
            same = cons.mn == prod.mn
            if same:
                ab = parse_regs(cons.ops[1]) | parse_regs(cons.ops[2])
                if vw & ab: n = max(n, 3)
            else:
                n = max(n, 3)
        if sw & cons.r:
            if cons.is_valu: n = max(n, 4 if cons.is_rdlane or cons.mn.startswith('v_writelane') else 2)
            if cons.is_vmem: n = max(n, 5)
    if prod.is_mfma:
        passes = 4 if '16x16x32' in prod.mn else 8
        big = {4: 8, 8: 12}[passes]
        if cons.is_mfma:
            if vw & cons.ra: n = max(n, big)
            if vw & cons.rc:
                if cons.rc == prod.w and cons.mn == prod.mn: pass
                else: n = max(n, {4: 6, 8: 10}[passes])
            if vw & cons.w and not (cons.w == prod.w and cons.mn == prod.mn):
                n = max(n, {4: 6, 8: 10}[passes])
        elif (vw & (cons.r | cons.w)) and (cons.is_valu or cons.is_vmem or cons.is_ds):
            n = max(n, big)
        if cons.is_valu and (prod.rc & cons.w):
            n = max(n, {4: 3, 8: 7}[passes])
    if prod.is_vmem and '_store' in prod.mn and ('x4' in prod.mn or 'x3' in prod.mn):
        if prod.data & cons.w:
            n = max(n, 2 if cons.is_valu else 1)
    return n

class Asm:
    def __init__(self):
        self.items = []
    def __call__(self, s):
        for l in s.split('\n'):
            l = l.strip()
            if not l: continue
            if l.startswith(';'):
                self.items.append(('c', l)); continue
            if l.endswith(':'):
                self.items.append(('l', l)); continue
            self.items.append(('i', Ins(l)))
    def label(self, n): self.items.append(('l', n + ':'))
    def comment(self, s): self.items.append(('c', '; ' + s))
    def finish(self):
        out = []
        hists = [[]]
        snaps = {}
        seen = set()
        nins = 0
        for kind, it in self.items:
            if kind == 'c':
                out.append('    ' + it); continue
            if kind == 'l':
                name = it[:-1]
                seen.add(name)
                for h in snaps.pop(name, []):
                    hists.append(list(h))
                if not hists: hists = [[]]
                out.append(it); continue
            req = 0
            for hist in hists:
                dist = 0
                for p in reversed(hist):
                    if dist >= 20: break
                    k = need(p, it)
                    if k > dist: req = max(req, k - dist)
                    dist += p.states()
            while req > 0:
                k = min(req, 16)
                nop = Ins(f's_nop {k-1}')
                for hist in hists: hist.append(nop)
                out.append(f'    s_nop {k-1}')
                req -= k; nins += 1
            for hist in hists:
                hist.append(it)
                if len(hist) > 40: del hist[:-24]
            uniq = []
            for hist in hists:
                if not any(len(hist) >= 22 and len(u) >= 22 and all(a is b for a, b in zip(hist[-22:], u[-22:])) for u in uniq):
                    uniq.append(hist)
            hists = uniq
            out.append('    ' + it.text)
            if it.mn.startswith('s_cbranch') or it.mn == 's_branch':
                tgt = it.ops[0]
                if tgt in seen:
                    pass
                else:
                    snaps.setdefault(tgt, []).extend([list(h) for h in hists])
                if it.mn == 's_branch': hists = []
            if it.mn == 's_endpgm': hists = []
            if not hists and it.mn not in ('s_branch', 's_endpgm'): hists = [[]]
        assert not snaps, f"unresolved labels {list(snaps)}"
        self.nops = nins
        return '\n'.join(out) + '\n'
```

```python
import sys, argparse
from hazasm import Asm

NAME = "concat_heads__gqa_block_cached__sliding_block_cached__decode"

QP0 = 4096
OP0 = QP0 + 64*5*1024
FP0 = OP0 + 64*6*2048
WS_END = FP0 + 10*32*1024
RED = 544*8
L_REDQ = [0, RED]
L_REDO = 2*RED
L_REDP = [3*RED, 4*RED]
L_Q = 5*RED
L_ST = L_Q + 256
LDS_BYTES = L_ST + 64

LOG2E = 0x3fb8aa3b
SCALE = 0x3db504f3

class Cfg:
    D = 5
    SQ_A = 8
    SQ_B = 13
    SS_A = 36
    SS_B = 33
    KRATE = 3
    VRATE = 3
    kv_flags = 'nt'
    w_flags = 'nt'
    stamps = False
    spin = 200000

S_W, S_XCD, S_SLOT, S_HL, S_ROLE, S_H = 30, 31, 32, 33, 34, 35
S_TAG = 29
SRD_K, SRD_V, SRD_WQ, SRD_WO, SRD_X, SRD_WS, SRD_OUT = 36, 40, 44, 48, 52, 56, 60
S_SOFF, S_T0, S_T1, S_T2 = 64, 65, 66, 67
S_MC2, S_MQV, S_MOV, S_MTC, S_MTD, S_MZ1, S_CMP = 68, 70, 72, 74, 76, 78, 80
S_SPIN, S_QPUB, S_OPUB, S_FPUB, S_SEL0, S_SEL1 = 82, 83, 84, 85, 86, 87
S_STAMP = 88
NSTAMP = 7

def sp(n): return f"s[{n}:{n+1}]"
def srd(n): return f"s[{n}:{n+3}]"
def vr(n, k=4): return f"v[{n}:{n+k-1}]"

class Prog:
    def __init__(self, a, cfg, kind):
        self.a, self.cfg, self.kind = a, cfg, kind
        self.nvm = 0
        self.done = -1
        self.uid = 0
        self.NT = 22 if kind == 'A' else 16
        self.NU = 1 if kind == 'A' else 2
        v = 0
        def alloc(n, al=1):
            nonlocal v
            v = (v + al - 1)//al*al
            r = v; v += n
            return r
        self.LANE = alloc(1)
        self.VKV = alloc(1); self.VKV21 = alloc(1); self.VWQ = alloc(1); self.VWO = alloc(1); self.VX = alloc(1)
        self.VQG = alloc(1); self.VOG = alloc(1); self.VSG = alloc(1); self.VPUB = alloc(1)
        self.VLR = alloc(1); self.VLW = alloc(1); self.VQW = alloc(1); self.VQR = alloc(1)
        self.MASK = alloc(4, 2)
        self.Q = alloc(4, 2)
        self.ACC = [alloc(4, 2) for _ in range(self.NU)]
        self.AOP = [alloc(4, 2), alloc(4, 2)]
        self.G = alloc(4, 2)
        self.GT = alloc(4, 2)
        self.GS = alloc(4, 2)
        self.X = [alloc(2, 2) for _ in range(self.NU)]
        self.T = alloc(8, 2)
        self.Z = alloc(2); self.P = alloc(2); self.WGT = alloc(1); self.MW = alloc(1)
        self.W = [alloc(4, 2) for _ in range(4*self.NU)]
        self.K = [alloc(4, 2) for _ in range(self.NT)]
        self.V = [alloc(4, 2) for _ in range(self.NT)]
        self.nvgpr = v
        assert v <= 256, v
    def L(self, s):
        self.uid += 1
        return f"L{self.kind}_{s}_{self.uid}"
    def vm_issue(self):
        i = self.nvm; self.nvm += 1; return i
    def vm_wait(self, idx):
        if idx <= self.done: return
        n = self.nvm - 1 - idx
        assert n <= 63
        self.a(f"s_waitcnt vmcnt({n})")
        self.done = idx
    def stamp(self, i):
        if self.cfg.stamps:
            self.a(f"s_memrealtime s[{S_STAMP+2*i}:{S_STAMP+2*i+1}]")
    def exec_mask(self, m):
        self.a(f"s_mov_b64 exec, {m}")
    def allred(self, regs, op='v_add_f32', rors=(2, 4, 8), dsts=None):
        a = self.a
        for k, r in enumerate(rors):
            last = k == len(rors) - 1
            for j, x in enumerate(regs):
                d = dsts[j] if (last and dsts) else x
                a(f"{op}_dpp v{d}, v{x}, v{x} row_ror:{r} row_mask:0xf bank_mask:0xf")
    def xrow(self, x, t, op='v_add_f32'):
        a = self.a
        a(f"v_mov_b32 v{t}, v{x}")
        a(f"v_permlane16_swap_b32 v{x}, v{t}")
        a(f"{op} v{x}, v{x}, v{t}")
        a(f"v_mov_b32 v{t}, v{x}")
        a(f"v_permlane32_swap_b32 v{x}, v{t}")
        a(f"{op} v{x}, v{x}, v{t}")
    def ld_stream(self, item):
        a, c = self.a, self.cfg
        kind, j = item
        if kind == 'WQ':
            u, t = divmod(j, 4)
            off = t*8192 + u*128*8192
            dst, va, sr, fl = self.W[j], self.VWQ, SRD_WQ, c.w_flags
        elif kind == 'WO':
            u, t = divmod(j, 4)
            r = self.W[j]
            so = '0'
            if u:
                a(f"s_movk_i32 s{S_SOFF}, 256"); so = f"s{S_SOFF}"
            a(f"buffer_load_dwordx4 {vr(r)}, v{self.VWO}, {srd(SRD_WO)}, {so} offen offset:{t*1280} {c.w_flags}")
            return self.vm_issue()
        else:
            off = j*8192
            dst = (self.K if kind == 'K' else self.V)[j]
            va = self.VKV21 if j == 21 else self.VKV
            sr, fl = (SRD_K if kind == 'K' else SRD_V), c.kv_flags
        so = '0'
        if off:
            a(f"s_mov_b32 s{S_SOFF}, {off}"); so = f"s{S_SOFF}"
        a(f"buffer_load_dwordx4 {vr(dst)}, v{va}, {srd(sr)}, {so} offen {fl}")
        return self.vm_issue()
    def unit_mfma(self, acc, t, wreg, build):
        a = self.a
        A = self.AOP[t & 1]
        build(A)
        c = '0' if t == 0 else vr(acc)
        a(f"v_mfma_f32_16x16x32_bf16 {vr(acc)}, {vr(A)}, {vr(wreg)}, {c}")
    def red_write(self, acc, region):
        a = self.a
        a("s_mov_b32 exec_hi, 0")
        a(f"ds_write_b128 v{self.VLW}, {vr(acc)} offset:{region}")
        a("s_mov_b32 exec_hi, -1")
    def barrier(self):
        self.a("s_waitcnt lgkmcnt(0)")
        self.a("s_barrier")
    def red_publish(self, region, soff):
        a, T, G = self.a, self.T, self.G
        a(f"ds_read_b64 v[{T}:{T+1}], v{self.VLR} offset:{region}")
        a("s_waitcnt lgkmcnt(0)")
        self.allred([T, T+1], dsts=[G, G+2])
        self.exec_mask(sp(S_MC2))
        a(f"buffer_store_dwordx4 {vr(G)}, v{self.VPUB}, {srd(SRD_WS)}, {soff} offen sc1")
        self.vm_issue()
        self.exec_mask(-1)
    def gather_issue(self, dst, va):
        self.a(f"buffer_load_dwordx4 {vr(dst)}, v{va}, {srd(SRD_WS)}, 0 offen sc1")
        return self.vm_issue()
    def gather_check(self, dst, va, idx):
        a = self.a
        self.vm_wait(idx)
        lc, lok = self.L('chk'), self.L('ok')
        a.label(lc)
        a(f"v_cmp_eq_u32 vcc, s{S_TAG}, v{dst+1}")
        a(f"v_cmp_eq_u32 {sp(S_CMP)}, s{S_TAG}, v{dst+3}")
        a(f"s_and_b64 vcc, vcc, {sp(S_CMP)}")
        a("s_cmp_eq_u64 vcc, -1")
        a(f"s_cbranch_scc1 {lok}")
        a(f"s_sub_u32 s{S_SPIN}, s{S_SPIN}, 1")
        a(f"s_cbranch_scc1 {lok}")
        a("s_sleep 2")
        a(f"buffer_load_dwordx4 {vr(dst)}, v{va}, {srd(SRD_WS)}, 0 offen sc1")
        a("s_waitcnt vmcnt(0)")
        a(f"s_branch {lc}")
        a.label(lok)
    def k_tiles(self, tiles):
        a = self.a
        for j in range(4):
            for t in tiles:
                K = self.K[t]
                c = '0' if j == 0 else f"v{K}"
                a(f"v_dot2_f32_bf16 v{K}, v{K+j}, v{self.Q+j}, {c}")
    def tree16(self, R, Z):
        a, T = self.a, self.T
        for i in range(8):
            a(f"v_add_f32_dpp v{R[i]}, v{R[i]}, v{R[i]} row_ror:8 row_mask:0xf bank_mask:0x3")
        for i in range(8):
            a(f"v_add_f32_dpp v{R[i]}, v{R[i+8]}, v{R[i+8]} row_ror:8 row_mask:0xf bank_mask:0xc")
        self.tree_bcd(R[:8], Z)
    def tree8(self, R, Z):
        a = self.a
        for r in R:
            if r is not None:
                a(f"v_add_f32_dpp v{r}, v{r}, v{r} row_ror:8 row_mask:0xf bank_mask:0xf")
        self.tree_bcd(R, Z)
    def tree_bcd(self, S, Z):
        a, T = self.a, self.T
        for i in range(4):
            a(f"v_add_f32_dpp v{S[i]}, v{S[i]}, v{S[i]} row_half_mirror row_mask:0xf bank_mask:0x5")
        for i in range(4):
            if S[i+4] is not None:
                a(f"v_add_f32_dpp v{S[i]}, v{S[i+4]}, v{S[i+4]} row_half_mirror row_mask:0xf bank_mask:0xa")
        for i in range(2):
            a(f"v_add_f32_dpp v{T+2*i}, v{S[i]}, v{S[i]} quad_perm:[2,3,0,1] row_mask:0xf bank_mask:0xf")
            a(f"v_add_f32_dpp v{T+2*i+1}, v{S[i+2]}, v{S[i+2]} quad_perm:[2,3,0,1] row_mask:0xf bank_mask:0xf")
        for i in range(2):
            a(f"v_cndmask_b32_e64 v{T+4+i}, v{T+2*i}, v{T+2*i+1}, {sp(S_MTC)}")
        a(f"v_add_f32_dpp v{T}, v{T+4}, v{T+4} quad_perm:[1,0,3,2] row_mask:0xf bank_mask:0xf")
        a(f"v_add_f32_dpp v{T+1}, v{T+5}, v{T+5} quad_perm:[1,0,3,2] row_mask:0xf bank_mask:0xf")
        a(f"v_cndmask_b32_e64 v{Z}, v{T}, v{T+1}, {sp(S_MTD)}")
    def round_scores(self, Z):
        a = self.a
        a(f"v_cvt_pk_bf16_f32 v{Z}, v{Z}, v{Z}")
        a(f"v_and_b32 v{Z}, 0xffff0000, v{Z}")
        a(f"v_mul_f32 v{Z}, 0x{SCALE:08x}, v{Z}")
        a(f"v_cvt_pk_bf16_f32 v{Z}, v{Z}, v{Z}")
        a(f"v_and_b32 v{Z}, 0xffff0000, v{Z}")
    def softmax(self, pace):
        a, T, Z, P, MW = self.a, self.T, self.Z, self.P, self.MW
        two = self.NT > 16
        if two:
            a(f"v_mov_b32 v{T}, 0xff800000")
            a(f"v_cndmask_b32_e64 v{Z+1}, v{T}, v{Z+1}, {sp(S_MZ1)}")
            a(f"v_max_f32 v{MW}, v{Z}, v{Z+1}")
        else:
            a(f"v_mov_b32 v{MW}, v{Z}")
        self.allred([MW], 'v_max_f32', (1, 2, 4, 8))
        self.xrow(MW, T, 'v_max_f32')
        zs = [Z, Z+1] if two else [Z]
        for z in zs: a(f"v_sub_f32 v{z}, v{z}, v{MW}")
        for z in zs: a(f"v_mul_f32 v{z}, 0x{LOG2E:08x}, v{z}")
        for z in zs: a(f"v_exp_f32 v{z}, v{z}")
        if two: a(f"v_add_f32 v{T+1}, v{Z}, v{Z+1}")
        else: a(f"v_mov_b32 v{T+1}, v{Z}")
        self.allred([T+1], 'v_add_f32', (1, 2, 4, 8))
        self.xrow(T+1, T+2, 'v_add_f32')
        a(f"v_mov_b32 v{T}, v{MW}")
        a(f"v_mov_b32 v{T+2}, s{S_W}")
        a(f"v_lshlrev_b32 v{T+2}, 3, v{T+2}")
        self.exec_mask(1)
        a(f"ds_write_b64 v{T+2}, v[{T}:{T+1}] offset:{L_ST}")
        self.exec_mask(-1)
        pace()
        self.barrier()
        a(f"v_and_b32 v{T+2}, 7, v{self.LANE}")
        a(f"v_lshlrev_b32 v{T+2}, 3, v{T+2}")
        a(f"ds_read_b64 v[{T}:{T+1}], v{T+2} offset:{L_ST}")
        a("s_waitcnt lgkmcnt(0)")
        a(f"v_max_f32_dpp v{T+2}, v{T}, v{T} quad_perm:[1,0,3,2] row_mask:0xf bank_mask:0xf")
        a(f"v_max_f32_dpp v{T+2}, v{T+2}, v{T+2} quad_perm:[2,3,0,1] row_mask:0xf bank_mask:0xf")
        a(f"v_max_f32_dpp v{T+2}, v{T+2}, v{T+2} row_half_mirror row_mask:0xf bank_mask:0xf")
        a(f"v_sub_f32 v{T+3}, v{T}, v{T+2}")
        a(f"v_sub_f32 v{T+4}, v{MW}, v{T+2}")
        a(f"v_mul_f32 v{T+3}, 0x{LOG2E:08x}, v{T+3}")
        a(f"v_mul_f32 v{T+4}, 0x{LOG2E:08x}, v{T+4}")
        a(f"v_exp_f32 v{T+3}, v{T+3}")
        a(f"v_exp_f32 v{T+4}, v{T+4}")
        a(f"v_mul_f32 v{T+3}, v{T+3}, v{T+1}")
        for z in zs: a(f"v_mul_f32 v{z}, v{z}, v{T+4}")
        a(f"v_add_f32_dpp v{T+3}, v{T+3}, v{T+3} quad_perm:[1,0,3,2] row_mask:0xf bank_mask:0xf")
        for j, z in enumerate(zs): a(f"v_cvt_pk_bf16_f32 v{P+j}, v{z}, v{z}")
        a(f"v_add_f32_dpp v{T+3}, v{T+3}, v{T+3} quad_perm:[2,3,0,1] row_mask:0xf bank_mask:0xf")
        a(f"v_add_f32_dpp v{self.G+2}, v{T+3}, v{T+3} row_half_mirror row_mask:0xf bank_mask:0xf")
        a(f"v_mov_b32 v{self.G}, v{T+2}")
        a(f"v_mov_b32 v{T+5}, 1024")
        self.exec_mask(1)
        a(f"buffer_store_dwordx4 {vr(self.G)}, v{T+5}, {srd(SRD_WS)}, s{S_OPUB} offen sc1")
        self.vm_issue()
        self.exec_mask(-1)
    def pv_tile(self, t):
        a = self.a
        A = self.AOP[t & 1]
        P = self.P + (t >> 4)
        for jj in range(4):
            a(f"v_and_b32_dpp v{A+jj}, v{P}, v{self.MASK+jj} row_newbcast:{t & 15} row_mask:0xf bank_mask:0xf")
        c = '0' if t == 0 else vr(self.ACC[0])
        a(f"v_mfma_f32_16x16x32_bf16 {vr(self.ACC[0])}, {vr(A)}, {vr(self.V[t])}, {c}")
    def stats_weights(self):
        a, T, GS, WGT = self.a, self.T, self.GS, self.WGT
        a(f"v_mov_b32 v{T}, v{GS}")
        self.allred([T], 'v_max_f32', (2, 4, 8))
        a(f"v_sub_f32 v{T+1}, v{GS}, v{T}")
        a(f"v_mul_f32 v{T+1}, 0x{LOG2E:08x}, v{T+1}")
        a(f"v_exp_f32 v{T+1}, v{T+1}")
        a(f"v_cndmask_b32_e64 v{T+1}, 0, v{T+1}, {sp(S_MOV)}")
        a(f"v_mul_f32 v{T+2}, v{T+1}, v{GS+2}")
        self.allred([T+2], 'v_add_f32', (2, 4, 8))
        a(f"v_rcp_f32 v{T+2}, v{T+2}")
        a(f"v_mul_f32 v{WGT}, v{T+1}, v{T+2}")

    def prologue(self):
        a, k = self.a, self.kind
        A = k == 'A'
        T = self.T
        L = self.LANE
        if A:
            a(f"s_mov_b32 s{S_T0}, s{S_ROLE}")
            a(f"s_cmp_eq_u32 s{S_ROLE}, 5")
            a(f"s_cselect_b32 s{S_T1}, 1, 0")
            a(f"s_cselect_b32 s{S_T2}, 0, s{S_ROLE}")
            for dst, pa, pb, size in ((SRD_WQ, 10, 20, 640*4096*2), (SRD_WO, 12, 22, 640*4096*2), (SRD_X, 4, 14, 1280)):
                a(f"s_cselect_b32 s{dst}, s{pb}, s{pa}")
                a(f"s_cselect_b32 s{dst+1}, s{pb+1}, s{pa+1}")
                a(f"s_mov_b32 s{dst+2}, {size}")
                a(f"s_mov_b32 s{dst+3}, 0x20000")
            kp, vp = 6, 8
        else:
            a(f"s_sub_u32 s{S_T2}, s{S_ROLE}, 6")
            a(f"s_lshl_b32 s{S_T2}, s{S_T2}, 1")
            a(f"s_add_u32 s{S_T0}, s{S_T2}, 6")
            a(f"s_add_u32 s{S_T2}, s{S_T2}, 1")
            a(f"s_mov_b32 s{S_T1}, 1")
            for dst, pb, size in ((SRD_WQ, 20, 640*4096*2), (SRD_WO, 22, 640*4096*2), (SRD_X, 14, 1280)):
                a(f"s_mov_b32 s{dst}, s{pb}")
                a(f"s_mov_b32 s{dst+1}, s{pb+1}")
                a(f"s_mov_b32 s{dst+2}, {size}")
                a(f"s_mov_b32 s{dst+3}, 0x20000")
            kp, vp = 16, 18
        a(f"v_and_b32 v{T}, 15, v{L}")
        a(f"v_lshrrev_b32 v{T+1}, 4, v{L}")
        a(f"s_lshl_b32 s{S_SOFF}, s{S_W}, 4")
        a(f"v_lshl_add_u32 v{T+2}, v{T+1}, 2, s{S_SOFF}")
        a(f"s_lshl_b32 s{S_SOFF}, s{S_T2}, 8")
        a(f"v_lshl_add_u32 v{self.VX}, v{T+2}, 1, s{S_SOFF}")
        a(f"s_lshl_b32 s{S_SOFF}, s{S_T2}, 20")
        a(f"s_lshl_b32 s{S_SPIN}, s{S_H}, 8")
        a(f"s_add_u32 s{S_SOFF}, s{S_SOFF}, s{S_SPIN}")
        a(f"v_lshlrev_b32 v{T+3}, 4, v{T}")
        a(f"v_lshl_add_u32 v{self.VWQ}, v{T+2}, 13, v{T+3}")
        a(f"v_add_u32 v{self.VWQ}, s{S_SOFF}, v{self.VWQ}")
        for u in range(self.NU):
            a(f"buffer_load_dwordx2 {vr(self.X[u], 2)}, v{self.VX}, {srd(SRD_X)}, 0 offen offset:{u*256}")
            self.vm_issue()
        self.xidx = self.nvm - 1

    def prologue2(self):
        a, k = self.a, self.kind
        A = k == 'A'
        T, L = self.T, self.LANE
        kp, vp = (6, 8) if A else (16, 18)
        for dst, p in ((SRD_K, kp), (SRD_V, vp)):
            a(f"s_mov_b32 s{dst}, s{p}")
            a(f"s_mov_b32 s{dst+1}, s{p+1}")
            a(f"s_mov_b32 s{dst+2}, 0x2000000")
            a(f"s_mov_b32 s{dst+3}, 0x20000")
        if A:
            a(f"s_mul_i32 s{S_SOFF}, s{S_ROLE}, 168")
            a(f"s_cmp_eq_u32 s{S_ROLE}, 5")
            a(f"s_cselect_b32 s{S_SPIN}, 8, 0")
            a(f"s_add_u32 s{S_SOFF}, s{S_SOFF}, s{S_SPIN}")
        else:
            a(f"s_sub_u32 s{S_SOFF}, s{S_ROLE}, 6")
            a(f"s_lshl_b32 s{S_SOFF}, s{S_SOFF}, 7")
            a(f"s_add_u32 s{S_SOFF}, s{S_SOFF}, 768")
        a(f"s_add_u32 s{S_SOFF}, s{S_SOFF}, s{S_W}")
        a(f"s_lshl_b32 s{S_SOFF}, s{S_SOFF}, 10")
        a(f"s_lshl_b32 s{S_SPIN}, s{S_H}, 20")
        a(f"s_add_u32 s{S_SOFF}, s{S_SOFF}, s{S_SPIN}")
        a(f"v_lshlrev_b32 v{self.VKV}, 4, v{L}")
        a(f"v_add_u32 v{self.VKV}, s{S_SOFF}, v{self.VKV}")
        if A:
            a(f"s_cmp_ge_u32 s{S_ROLE}, 4")
            a(f"s_cselect_b32 s{S_SPIN}, 0, 0x40000000")
            a(f"v_add_u32 v{self.VKV21}, s{S_SPIN}, v{self.VKV}")
            a(f"s_mov_b32 s{S_SPIN}, 0x001f001f")
            a(f"s_cselect_b32 s{S_MZ1}, 0x003f003f, s{S_SPIN}")
            a(f"s_mov_b32 s{S_MZ1+1}, s{S_MZ1}")

    def prologue3(self):
        a, k = self.a, self.kind
        A = k == 'A'
        T, L = self.T, self.LANE
        a(f"s_lshl_b32 s{S_SOFF}, s{S_H}, 7")
        a(f"v_add_u32 v{T+4}, s{S_SOFF}, v{T+2}")
        a(f"s_movk_i32 s{S_SOFF}, 1280")
        a(f"v_mad_u32_u24 v{self.VWO}, v{T+4}, s{S_SOFF}, v{T+3}")
        a(f"s_lshl_b32 s{S_SOFF}, s{S_T2}, 8")
        a(f"v_add_u32 v{self.VWO}, s{S_SOFF}, v{self.VWO}")
        a(f"s_mov_b32 s{SRD_WS}, s26\ns_mov_b32 s{SRD_WS+1}, s27\ns_mov_b32 s{SRD_WS+2}, {WS_END}\ns_mov_b32 s{SRD_WS+3}, 0x20000")
        a(f"s_mov_b32 s{SRD_OUT}, s24\ns_mov_b32 s{SRD_OUT+1}, s25\ns_mov_b32 s{SRD_OUT+2}, 2560\ns_mov_b32 s{SRD_OUT+3}, 0x20000")
        a(f"v_and_b32 v{T+4}, 1, v{T}")
        a(f"v_lshlrev_b32 v{T+5}, 4, v{T+4}")
        a(f"v_mov_b32 v{T+6}, 0xffff")
        a(f"v_lshlrev_b32 v{T+5}, v{T+5}, v{T+6}")
        a(f"v_lshrrev_b32 v{T+6}, 1, v{T}")
        for jj in range(4):
            a(f"v_cmp_eq_u32 vcc, {jj}, v{T+6}")
            a(f"v_cndmask_b32 v{self.MASK+jj}, 0, v{T+5}, vcc")
        a(f"s_lshl_b32 s{S_SOFF}, s{S_W}, 7")
        a(f"v_lshlrev_b32 v{T+5}, 5, v{T+1}")
        a(f"v_lshl_add_u32 v{T+5}, v{T+4}, 4, v{T+5}")
        a(f"v_add_u32 v{self.VPUB}, s{S_SOFF}, v{T+5}")
        a(f"v_lshrrev_b32 v{T+5}, 1, v{self.VPUB}")
        a(f"s_movk_i32 s{S_SOFF}, 544")
        a(f"v_mad_u32_u24 v{self.VLR}, v{T+6}, s{S_SOFF}, v{T+5}")
        a(f"s_mul_i32 s{S_SOFF}, s{S_W}, 544")
        a(f"v_lshlrev_b32 v{T+5}, 5, v{T}")
        a(f"v_lshl_add_u32 v{T+5}, v{T+1}, 4, v{T+5}")
        a(f"v_add_u32 v{self.VLW}, s{S_SOFF}, v{T+5}")
        a(f"s_lshl_b32 s{S_SOFF}, s{S_W}, 5")
        a(f"s_add_u32 s{S_SOFF}, s{S_SOFF}, {L_Q}")
        a(f"v_lshlrev_b32 v{T+5}, 3, v{T+1}")
        a(f"v_lshl_add_u32 v{T+5}, v{T}, 2, v{T+5}")
        a(f"v_add_u32 v{self.VQW}, s{S_SOFF}, v{T+5}")
        a(f"v_add_u32 v{self.VQR}, {L_Q}, v{T+3}")
        ab = 0 if A else 1
        a(f"s_add_u32 s{S_SOFF}, s{S_H}, {ab*32}")
        a(f"s_mul_i32 s{S_SOFF}, s{S_SOFF}, 5120")
        a(f"s_add_u32 s{S_SOFF}, s{S_SOFF}, {QP0}")
        a(f"v_min_u32 v{T+5}, 4, v{T+6}")
        a(f"v_lshl_add_u32 v{T+5}, v{T+5}, 10, v{self.VPUB}")
        a(f"v_add_u32 v{self.VQG}, s{S_SOFF}, v{T+5}")
        a(f"s_lshl_b32 s{S_QPUB}, s{S_T1}, 5")
        a(f"s_add_u32 s{S_QPUB}, s{S_QPUB}, s{S_H}")
        a(f"s_mul_i32 s{S_FPUB}, s{S_QPUB}, {6*2048}")
        a(f"s_mul_i32 s{S_QPUB}, s{S_QPUB}, 5")
        a(f"s_add_u32 s{S_QPUB}, s{S_QPUB}, s{S_T2}")
        a(f"s_lshl_b32 s{S_QPUB}, s{S_QPUB}, 10")
        a(f"s_add_u32 s{S_QPUB}, s{S_QPUB}, {QP0}")
        a(f"s_add_u32 s{S_FPUB}, s{S_FPUB}, {OP0}")
        a(f"s_cmp_eq_u32 s{S_T1}, 1")
        a(f"s_cselect_b32 s{S_SOFF}, 1, 5")
        a(f"s_mov_b32 s{S_MOV}, 0x0fff0fff")
        a(f"s_cselect_b32 s{S_MOV}, 0x000f000f, s{S_MOV}")
        a(f"s_mov_b32 s{S_MOV+1}, s{S_MOV}")
        a(f"v_min_u32 v{T+5}, s{S_SOFF}, v{T+6}")
        a(f"v_lshlrev_b32 v{T+5}, 11, v{T+5}")
        a(f"v_add_u32 v{T+5}, s{S_FPUB}, v{T+5}")
        a(f"v_add_u32 v{self.VSG}, 1024, v{T+5}")
        a(f"v_add_u32 v{self.VOG}, v{T+5}, v{self.VPUB}")
        a(f"s_add_u32 s{S_OPUB}, s{S_H}, {ab*32}")
        a(f"s_mul_i32 s{S_OPUB}, s{S_OPUB}, 6")
        a(f"s_add_u32 s{S_OPUB}, s{S_OPUB}, s{S_ROLE}")
        if not A: a(f"s_sub_u32 s{S_OPUB}, s{S_OPUB}, 6")
        a(f"s_lshl_b32 s{S_OPUB}, s{S_OPUB}, 11")
        a(f"s_add_u32 s{S_OPUB}, s{S_OPUB}, {OP0}")
        a(f"s_lshl_b32 s{S_FPUB}, s{S_T0}, 5")
        a(f"s_add_u32 s{S_FPUB}, s{S_FPUB}, s{S_H}")
        a(f"s_lshl_b32 s{S_FPUB}, s{S_FPUB}, 10")
        a(f"s_add_u32 s{S_FPUB}, s{S_FPUB}, {FP0}")
        for reg, val in ((S_MC2, 0x00030003), (S_MQV, 0x03ff03ff), (S_MTC, 0xcccccccc), (S_MTD, 0xaaaaaaaa)):
            a(f"s_mov_b32 s{reg}, 0x{val:08x}\ns_mov_b32 s{reg+1}, 0x{val:08x}")
        a(f"s_mov_b32 s{S_SEL0}, 0x01000100\ns_mov_b32 s{S_SEL1}, 0x03020302")
        a(f"s_mov_b32 s{S_SPIN}, {self.cfg.spin}")

    def tag_setup(self):
        a = self.a
        a(f"s_mul_i32 s{S_TAG}, s28, 0x9e3779b1")
        a(f"s_add_u32 s{S_TAG}, s{S_TAG}, 0x7f4a7c15")
        a(f"v_mov_b32 v{self.G+1}, s{S_TAG}")
        a(f"v_mov_b32 v{self.G+3}, s{S_TAG}")

    def build(self):
        a, c = self.a, self.cfg
        NT, NU, D = self.NT, self.NU, c.D
        A = self.kind == 'A'
        stream = [('WQ', j) for j in range(4*NU)] + [('K', t) for t in range(NT)] + [('V', t) for t in range(NT)] + [('WO', j) for j in range(4*NU)]
        idx = {}
        self.prologue()
        ip = 0
        def issue():
            nonlocal ip
            if ip < len(stream):
                idx[stream[ip]] = self.ld_stream(stream[ip]); ip += 1
        for _ in range(min(D, 4*NU)): issue()
        self.prologue2()
        while ip < D: issue()
        self.prologue3()
        self.stamp(1)
        k0 = 4*NU
        v0 = k0 + NT
        w0 = v0 + NT
        SQ = c.SQ_A if A else c.SQ_B
        SS = c.SS_A if A else c.SS_B
        kdone = 0; vdone = 0
        qready = False; pready = False
        qg = sg = None
        T = self.T
        def pace(step):
            self.vm_wait(idx[stream[step]])
            issue()
        step = 0
        while step < w0:
            item = stream[step]
            if step == 0: self.vm_wait(self.xidx)
            pace(step)
            if step < k0:
                u, t = divmod(step, 4)
                X = self.X[u]
                def build(Aop, X=X, t=t):
                    a(f"v_perm_b32 v{T}, v{X + (t >> 1)}, v{X + (t >> 1)}, s{S_SEL1 if t & 1 else S_SEL0}")
                    for jj in range(4):
                        a(f"v_and_b32 v{Aop+jj}, v{T}, v{self.MASK+jj}")
                self.unit_mfma(self.ACC[u], t, self.W[step], build)
                if step == k0 - 1:
                    for u in range(NU): self.red_write(self.ACC[u], L_REDQ[u])
                    self.barrier()
                    self.tag_setup()
                    for u in range(NU):
                        if u: a(f"s_add_u32 s{S_QPUB}, s{S_QPUB}, 1024")
                        self.red_publish(L_REDQ[u], f"s{S_QPUB}")
                    self.stamp(2)
            if step == SQ:
                qg = self.gather_issue(self.GT, self.VQG)
            if step == SQ + D:
                self.gather_check(self.GT, self.VQG, qg)
                d0, d1 = self.GT, self.GT + 2
                a(f"v_cndmask_b32_e64 v{d0}, 0, v{d0}, {sp(S_MQV)}")
                a(f"v_cndmask_b32_e64 v{d1}, 0, v{d1}, {sp(S_MQV)}")
                self.allred([d0, d1])
                a(f"v_cvt_pk_bf16_f32 v{T}, v{d0}, v{d1}")
                self.exec_mask(sp(S_MC2))
                a(f"ds_write_b32 v{self.VQW}, v{T}")
                self.exec_mask(-1)
                self.barrier()
                a(f"ds_read_b128 {vr(self.Q)}, v{self.VQR}")
                a("s_waitcnt lgkmcnt(0)")
                qready = True
                self.stamp(3)
            if qready and kdone < NT:
                avail = min(NT, step - k0 + 1)
                n = min(c.KRATE, avail - kdone)
                if n > 0:
                    hi = kdone + n
                    if kdone < 16 < hi: hi = 16
                    self.k_tiles(list(range(kdone, hi)))
                    kdone = hi
                    if kdone == 16:
                        self.tree16([self.K[t] for t in range(16)], self.Z)
                        self.round_scores(self.Z)
                    if kdone == NT:
                        if NT > 16:
                            R = [self.K[t] if t < NT else None for t in range(16, 24)]
                            self.tree8(R, self.Z + 1)
                            self.round_scores(self.Z + 1)
                        nxt = [step]
                        def extra_pace():
                            nxt[0] += 1
                            pace(nxt[0])
                        self.softmax(extra_pace)
                        step = nxt[0]
                        pready = True
                        self.stamp(4)
            if pready and vdone < NT:
                avail = min(NT, step - v0 + 1)
                n = min(c.VRATE, avail - vdone)
                for t in range(vdone, vdone + max(n, 0)):
                    self.pv_tile(t)
                vdone += max(n, 0)
            if step >= SS and sg is None and pready:
                sg = self.gather_issue(self.GS, self.VSG); ss_step = step
            if sg is not None and sg >= 0 and step >= ss_step + D:
                self.gather_check(self.GS, self.VSG, sg)
                self.stats_weights()
                sg = -1
            step += 1
        assert kdone == NT and pready
        while vdone < NT:
            self.vm_wait(idx[('V', vdone)])
            self.pv_tile(vdone); vdone += 1
        self.stamp(5)
        while ip < len(stream): issue()
        self.red_write(self.ACC[0], L_REDO)
        self.barrier()
        self.red_publish(L_REDO, f"s{S_OPUB}")
        if sg is None:
            sg = self.gather_issue(self.GS, self.VSG); ss_step = 0
        if sg >= 0:
            self.gather_check(self.GS, self.VSG, sg)
            self.stats_weights()
        og = self.gather_issue(self.GT, self.VOG)
        self.gather_check(self.GT, self.VOG, og)
        self.done = self.nvm - 1
        d0, d1 = self.GT, self.GT + 2
        a(f"v_mul_f32 v{d0}, v{d0}, v{self.WGT}")
        a(f"v_mul_f32 v{d1}, v{d1}, v{self.WGT}")
        self.allred([d0, d1])
        a(f"v_cvt_pk_bf16_f32 v{T}, v{d0}, v{d0}")
        a(f"v_cvt_pk_bf16_f32 v{T+1}, v{d1}, v{d1}")
        Aall = [self.K[0], self.K[1], self.K[2], self.K[3]]
        for t in range(4):
            p = t >> 1
            for jj in range(4):
                a(f"v_and_b32_dpp v{Aall[t]+jj}, v{T + (t & 1)}, v{self.MASK+jj} quad_perm:[{p},{p},{p},{p}] row_mask:0xf bank_mask:0xf")
        for t in range(4):
            for u in range(NU):
                cc = '0' if t == 0 else vr(self.ACC[u])
                a(f"v_mfma_f32_16x16x32_bf16 {vr(self.ACC[u])}, {vr(Aall[t])}, {vr(self.W[4*u+t])}, {cc}")
        for u in range(NU): self.red_write(self.ACC[u], L_REDP[u])
        self.barrier()
        for u in range(NU):
            if u: a(f"s_add_u32 s{S_FPUB}, s{S_FPUB}, {32*1024}")
            self.red_publish(L_REDP[u], f"s{S_FPUB}")
        self.stamp(6)
        a(f"s_branch L_final")

def final_part(a, cfg):
    T = 40
    a.label("L_final")
    a(f"s_cmp_ge_u32 s2, 80")
    a("s_cbranch_scc1 L_fin_done")
    a(f"s_cmp_lg_u32 s{S_W}, 0")
    a("s_cbranch_scc1 L_fin_done")
    a(f"s_lshr_b32 s{S_T0}, s2, 3")
    a(f"s_and_b32 s{S_T1}, s2, 7")
    a(f"s_lshl_b32 s{S_T2}, s{S_T0}, 15")
    a(f"s_lshl_b32 s{S_SOFF}, s{S_T1}, 7")
    a(f"s_add_u32 s{S_T2}, s{S_T2}, s{S_SOFF}")
    a(f"s_add_u32 s{S_T2}, s{S_T2}, {FP0}")
    a(f"v_lshrrev_b32 v{T}, 3, v0")
    a(f"v_and_b32 v{T+1}, 7, v0")
    a(f"v_lshlrev_b32 v{T}, 10, v{T}")
    a(f"v_lshl_add_u32 v{T}, v{T+1}, 4, v{T}")
    a(f"v_add_u32 v{T}, s{S_T2}, v{T}")
    R = [T+4, T+8, T+12, T+16]
    a.label("L_fin_poll")
    for i in range(4):
        a(f"s_mov_b32 s{S_SOFF}, {i*8192}")
        a(f"buffer_load_dwordx4 {vr(R[i])}, v{T}, {srd(SRD_WS)}, s{S_SOFF} offen sc1")
    a("s_waitcnt vmcnt(0)")
    a(f"s_mov_b64 {sp(S_MC2)}, -1")
    for i in range(4):
        a(f"v_cmp_eq_u32 vcc, s{S_TAG}, v{R[i]+1}")
        a(f"v_cmp_eq_u32 {sp(S_CMP)}, s{S_TAG}, v{R[i]+3}")
        a(f"s_and_b64 {sp(S_MC2)}, {sp(S_MC2)}, vcc")
        a(f"s_and_b64 {sp(S_MC2)}, {sp(S_MC2)}, {sp(S_CMP)}")
    a(f"s_cmp_eq_u64 {sp(S_MC2)}, -1")
    a("s_cbranch_scc1 L_fin_ok")
    a(f"s_sub_u32 s{S_SPIN}, s{S_SPIN}, 1")
    a("s_cbranch_scc1 L_fin_ok")
    a("s_sleep 1")
    a("s_branch L_fin_poll")
    a.label("L_fin_ok")
    a(f"v_add_f32 v{R[0]}, v{R[0]}, v{R[1]}")
    a(f"v_add_f32 v{R[0]+2}, v{R[0]+2}, v{R[1]+2}")
    a(f"v_add_f32 v{R[2]}, v{R[2]}, v{R[3]}")
    a(f"v_add_f32 v{R[2]+2}, v{R[2]+2}, v{R[3]+2}")
    a(f"v_add_f32 v{R[0]}, v{R[0]}, v{R[2]}")
    a(f"v_add_f32 v{R[0]+2}, v{R[0]+2}, v{R[2]+2}")
    x, y = R[0], R[0]+2
    a(f"v_add_f32_dpp v{x}, v{x}, v{x} row_ror:8 row_mask:0xf bank_mask:0xf")
    a(f"v_add_f32_dpp v{y}, v{y}, v{y} row_ror:8 row_mask:0xf bank_mask:0xf")
    for sw in ('v_permlane16_swap_b32', 'v_permlane32_swap_b32'):
        a(f"v_mov_b32 v{R[1]}, v{x}")
        a(f"v_mov_b32 v{R[1]+1}, v{y}")
        a(f"{sw} v{x}, v{R[1]}")
        a(f"{sw} v{y}, v{R[1]+1}")
        a(f"v_add_f32 v{x}, v{x}, v{R[1]}")
        a(f"v_add_f32 v{y}, v{y}, v{R[1]+1}")
    a(f"v_cvt_pk_bf16_f32 v{x}, v{x}, v{y}")
    a(f"s_lshl_b32 s{S_T2}, s{S_T0}, 8")
    a(f"s_lshl_b32 s{S_SOFF}, s{S_T1}, 5")
    a(f"s_add_u32 s{S_T2}, s{S_T2}, s{S_SOFF}")
    a(f"v_lshlrev_b32 v{T+1}, 2, v{T+1}")
    a(f"v_add_u32 v{T+1}, s{S_T2}, v{T+1}")
    a("s_mov_b64 exec, 0xff")
    a(f"buffer_store_dword v{x}, v{T+1}, {srd(SRD_OUT)}, 0 offen")
    a(f"s_cmp_eq_u32 s2, 40")
    a("s_cbranch_scc0 L_fin_noep")
    a("s_mov_b64 exec, 1")
    a(f"v_mov_b32 v{T+2}, s{S_TAG}")
    a(f"v_mov_b32 v{T+3}, 0")
    a(f"buffer_store_dword v{T+2}, v{T+3}, {srd(SRD_WS)}, 0 offen sc1")
    a.label("L_fin_noep")
    a("s_mov_b64 exec, -1")
    a.label("L_fin_done")
    if cfg.stamps:
        a(f"s_memrealtime s[{S_STAMP+14-2}:{S_STAMP+14-1}]") if False else None
        a(f"s_memrealtime s[4:5]")
        a("s_waitcnt lgkmcnt(0)")
        a(f"s_add_u32 s26, s26, {128<<20}")
        a("s_addc_u32 s27, s27, 0")
        a(f"s_lshl_b32 s{S_T0}, s2, 4")
        a(f"s_add_u32 s{S_T0}, s{S_T0}, s{S_W}")
        a(f"s_lshl_b32 s{S_T0}, s{S_T0}, 6")
        a(f"s_add_u32 s26, s26, s{S_T0}")
        a("s_addc_u32 s27, s27, 0")
        for i in range(NSTAMP):
            a(f"v_mov_b32 v{40+2*i}, s{S_STAMP+2*i}")
            a(f"v_mov_b32 v{41+2*i}, s{S_STAMP+2*i+1}")
        a(f"v_mov_b32 v54, s4\nv_mov_b32 v55, s5")
        a("v_mov_b32 v60, 0")
        a("s_mov_b64 exec, 1")
        for i in range(4):
            a(f"global_store_dwordx4 v60, v[{40+4*i}:{43+4*i}], s[26:27] offset:{16*i}")
    a.label("L_end")
    a("s_endpgm")

def generate(cfg, with_metadata=False):
    a = Asm()
    a(f"""
    s_cmp_ge_u32 s2, 256
    s_cbranch_scc1 L_end
    """)
    if cfg.stamps: a(f"s_memrealtime s[{S_STAMP}:{S_STAMP+1}]")
    a(f"""
    s_load_dwordx16 s[4:19], s[0:1], 0
    s_load_dwordx4 s[20:23], s[0:1], 64
    s_load_dwordx2 s[24:25], s[0:1], 80
    s_load_dwordx2 s[26:27], s[0:1], 96
    v_lshrrev_b32 v1, 6, v0
    v_and_b32 v0, 63, v0
    v_readfirstlane_b32 s{S_W}, v1
    s_and_b32 s{S_XCD}, s2, 7
    s_lshr_b32 s{S_SLOT}, s2, 3
    s_lshr_b32 s{S_HL}, s{S_SLOT}, 3
    s_and_b32 s{S_ROLE}, s{S_SLOT}, 7
    s_lshl_b32 s{S_H}, s{S_XCD}, 2
    s_add_u32 s{S_H}, s{S_H}, s{S_HL}
    s_waitcnt lgkmcnt(0)
    s_load_dword s28, s[26:27], 0
    s_cmp_ge_u32 s{S_ROLE}, 6
    s_cbranch_scc1 L_progB
    """)
    pa = Prog(a, cfg, 'A'); pa.build()
    a.label("L_progB")
    pb = Prog(a, cfg, 'B'); pb.build()
    final_part(a, cfg)
    body = a.finish()
    nv = max(pa.nvgpr, pb.nvgpr, 64)
    hdr = open('cdna_kernels/' + NAME + '.s.ref').read().split('; Override launch')[0]
    txt = hdr + f"""; Override launch geometry by editing the next line (default: block=256,
; grid=ceil(out_elems/256), lds=0). Harness parses it; keep it on one line.
; @launch grid=(256,1,1) block=(512,1,1) lds={LDS_BYTES}
.amdgcn_target "amdgcn-amd-amdhsa--gfx950"
.text
.globl {NAME}_kernel
.p2align 8
.type {NAME}_kernel,@function
{NAME}_kernel:
{body}
.section .rodata,"a"
.p2align 6
.amdhsa_kernel {NAME}_kernel
  .amdhsa_next_free_vgpr 256
  .amdhsa_next_free_sgpr 102
  .amdhsa_accum_offset 256
  .amdhsa_group_segment_fixed_size 0
  .amdhsa_kernarg_size 104
  .amdhsa_user_sgpr_count 2
  .amdhsa_user_sgpr_kernarg_segment_ptr 1
  .amdhsa_system_sgpr_workgroup_id_x 1
.end_amdhsa_kernel
"""
    if with_metadata:
        txt += f"""
.amdgpu_metadata
---
amdhsa.version: [1, 2]
amdhsa.kernels:
  - .name: {NAME}_kernel
    .symbol: {NAME}_kernel.kd
    .kernarg_segment_size: 104
    .kernarg_segment_align: 8
    .group_segment_fixed_size: 0
    .private_segment_fixed_size: 0
    .wavefront_size: 64
    .sgpr_count: 102
    .vgpr_count: 256
    .max_flat_workgroup_size: 512
    .args:
      - {{.name: kernargs, .size: 104, .offset: 0, .value_kind: by_value}}
...
.end_amdgpu_metadata
"""
    sys.stderr.write(f"vgprs A {pa.nvgpr} B {pb.nvgpr}, nops {a.nops}, lds {LDS_BYTES}\n")
    return txt

if __name__ == '__main__':
    ap = argparse.ArgumentParser()
    ap.add_argument('-o', default='k.s')
    ap.add_argument('--meta', action='store_true')
    ap.add_argument('--set', action='append', default=[])
    args = ap.parse_args()
    cfg = Cfg()
    for kv in args.set:
        k, v = kv.split('=')
        old = getattr(cfg, k)
        setattr(cfg, k, type(old)(eval(v)) if not isinstance(old, str) else v)
    open(args.o, 'w').write(generate(cfg, args.meta))
```
